```python
import torch

def _softmax(x, axis=-1):
    return torch.softmax(x, dim=axis)
def _gelu(x):
    return torch.nn.functional.gelu(x, approximate="tanh")
def _silu(x):
    return torch.nn.functional.silu(x)
def _sigmoid(x):
    return torch.sigmoid(x)
def _layernorm(x, axis=-1, eps=1e-5):
    m = x.mean(dim=axis, keepdim=True)
    v = x.var(dim=axis, keepdim=True, unbiased=False)
    return (x - m) / torch.sqrt(v + eps)
def _scatter_add(tgt, idx, src, axis=0):
    return tgt.clone().index_add_(axis, idx, src)
def _segment_sum(src, seg, n):
    out = torch.zeros((n,) + src.shape[1:], dtype=src.dtype)
    return out.index_add_(0, seg, src)
def _pad(x, pw):
    flat = tuple(v for pair in reversed(pw) for v in pair)
    return torch.nn.functional.pad(x, flat)

kernel_name = 'sequential_preLN__softmax_full_mha__swiglu_ffn__prompt'

def setup_inputs():

    _w = (lambda a: (lambda t: t.to(torch.bfloat16) if t.is_floating_point() else t)(torch.as_tensor(a)))
    def _A_setup():
        B, S, D = 1, 2048, 640
        return {
            "x": _w((lambda *s: torch.randn(*s, dtype=torch.bfloat16) * 0.05)(B, S, D)),
            "wqkv": _w((lambda *s: torch.randn(*s, dtype=torch.bfloat16) * 0.05)(D, 3 * D)),
            "wo": _w((lambda *s: torch.randn(*s, dtype=torch.bfloat16) * 0.05)(D, D)),
        }
    _A_in = _A_setup()

    def _B_setup():
        B, S, D, F = 1, 2048, 640, 1728
        return {
            "x": _w((lambda *s: torch.randn(*s, dtype=torch.bfloat16) * 0.05)(B, S, D)),
            "w_gate": _w((lambda *s: torch.randn(*s, dtype=torch.bfloat16) * 0.05)(D, F)),
            "w_up": _w((lambda *s: torch.randn(*s, dtype=torch.bfloat16) * 0.05)(D, F)),
            "w_down": _w((lambda *s: torch.randn(*s, dtype=torch.bfloat16) * 0.05)(F, D)),
        }
    _B_in = _B_setup()

    return {
        "A_x": _A_in["x"],
        "A_wqkv": _A_in["wqkv"],
        "A_wo": _A_in["wo"],
        "B_x": _B_in["x"],
        "B_w_gate": _B_in["w_gate"],
        "B_w_up": _B_in["w_up"],
        "B_w_down": _B_in["w_down"],
    }

def reference(A_x, A_wqkv, A_wo, B_x, B_w_gate, B_w_up, B_w_down):
    def _A_ref(x, wqkv, wo):
        B, S, D = x.shape
        H = 32; Dh = D // H
        qkv = (lambda x, *d: x.permute(*d))((x @ wqkv).reshape(B, S, 3, H, Dh), 2, 0, 3, 1, 4)
        q, k, v = qkv[0], qkv[1], qkv[2]
        scale = Dh ** -0.5
        scores = torch.einsum("bhqd,bhkd->bhqk", q, k) * scale
        p = _softmax(scores, axis=-1)
        o = torch.einsum("bhqk,bhkd->bhqd", p, v)
        return (lambda x, *d: x.permute(*d))(o, 0, 2, 1, 3).reshape(B, S, D) @ wo

    def _B_ref(x, w_gate, w_up, w_down):
        g = _silu(x @ w_gate)
        u = x @ w_up
        return (g * u) @ w_down

    x = A_x
    h = x + _A_ref(_layernorm(x, axis=-1), A_wqkv, A_wo)
    h2 = h + _B_ref(_layernorm(h, axis=-1), B_w_gate, B_w_up, B_w_down)
    return h2
```

```python
from lib import *
import math
S, D, H, DH, F = 2048, 640, 32, 20, 1728
QB = 0x0000000
KV = 0x0300000
OB = 0x0900000
HB = 0x0C00000
AB = 0x0F00000
ST = 0x1600000
CS = 0x1680000
WS_SIZE = 0x1800000
Q_HS, Q_GS = 81920, 5120
KV_HS, KV_GS = 167936, 10496
QSCALE = DH ** -0.5 * math.log2(math.e)
EPS = 1e-5
OOB = 0x7ff00000

def wave_id(a, sreg):
    a(f'''v_lshrrev_b32 v1, 6, v0
    v_and_b32 v0, 63, v0
    v_readfirstlane_b32 s{sreg}, v1''')
```

```python
from common import *

LDS_A = 131072 + 1536
STA, STB, STC = 131072, 131072 + 512, 131072 + 1024

def gen_A(a, name):
    kernel_begin(a, name)
    a('''s_cmp_ge_u32 s2, 256
    s_cbranch_scc1 KA_END
    s_load_dwordx4 s[20:23], s[0:1], 0
    s_load_dwordx4 s[28:31], s[0:1], 32
    s_load_dwordx2 s[24:25], s[0:1], 72''')
    wave_id(a, 16)
    a('''s_and_b32 s3, s2, 7
    s_lshr_b32 s17, s2, 3
    s_cmp_ge_u32 s17, 30
    s_cbranch_scc1 KA_COLSUM
    s_and_b32 s18, s3, 1
    s_mul_i32 s18, s18, 30
    s_add_u32 s18, s18, s17
    s_lshr_b32 s19, s3, 1
    s_lshl_b32 s19, s19, 2
    s_and_b32 s26, s18, 3
    s_add_u32 s17, s19, s26
    s_lshr_b32 s18, s18, 2
    s_mul_i32 s19, s18, 205
    s_lshr_b32 s19, s19, 10
    s_mul_i32 s26, s19, 5
    s_sub_u32 s26, s18, s26''')
    R = Regs(1)
    vr, vh, vt0, vt1 = R(), R(), R(), R()
    vXr = R(4, 1); vWr = R()
    a(f'''v_and_b32 v{vr}, 31, v0
    v_lshrrev_b32 v{vh}, 5, v0
    s_waitcnt lgkmcnt(0)''')
    srd(a, 4, 20, S * D * 2)
    srd(a, 8, 22, D * 3 * D * 2)
    a('s_cmp_lt_u32 s16, 4\ns_cbranch_scc1 KA_MAIN')
    m0 = R.mark()

    def frag_addr(srt, sct):
        a(f'''v_bfe_u32 v{vt0}, v{vr}, 1, 3
        v_xor_b32 v{vt0}, v{vt0}, v{vh}
        v_lshl_add_u32 v{vt1}, v{vr}, 7, s{srt}''')
        for k in range(4):
            a(f'''v_xor_b32 v{vXr+k}, {2*k}, v{vt0}
            v_lshl_add_u32 v{vXr+k}, v{vXr+k}, 4, v{vt1}''')
        a(f'''v_bfe_u32 v{vt0}, v0, 2, 2
        v_lshlrev_b32 v{vt0}, 6, v{vt0}
        v_lshl_add_u32 v{vt0}, v{vh}, 11, v{vt0}
        v_bfe_u32 v{vt1}, v0, 4, 1
        v_lshl_add_u32 v{vt0}, v{vt1}, 5, v{vt0}
        v_and_b32 v{vt1}, 3, v0
        v_lshl_add_u32 v{vt0}, v{vt1}, 3, v{vt0}
        v_add_u32 v{vWr}, s{sct}, v{vt0}''')

    vX = R(4, 1); vW = R(4, 1)
    a('s_sub_u32 s16, s16, 4')
    a(f'''v_lshrrev_b32 v{vt0}, 3, v0
    v_mul_u32_u24 v{vt0}, 1280, v{vt0}
    v_lshrrev_b32 v{vt1}, 4, v0''')
    for e in range(4):
        a(f'''v_xor_b32 v{vX+e}, v0, v{vt1}''')
        if e & 1:
            a(f'v_xor_b32 v{vX+e}, 4, v{vX+e}')
        a(f'''v_and_b32 v{vX+e}, 7, v{vX+e}
        v_lshl_add_u32 v{vX+e}, v{vX+e}, 4, v{vt0}''')
        if e:
            a(f'v_add_u32 v{vX+e}, {e*8*1280 - e*1024}, v{vX+e}')
    a(f'''v_bfe_u32 v{vt0}, v0, 2, 2
    v_mul_u32_u24 v{vt0}, 3840, v{vt0}
    v_lshl_add_u32 v{vt0}, v{vt1}, 6, v{vt0}
    v_and_b32 v{vt1}, 3, v0
    v_lshl_add_u32 v{vW}, v{vt1}, 4, v{vt0}''')
    for e in range(1, 4):
        a(f'v_add_u32 v{vW+e}, {e*4*3840 - e*1024}, v{vW}')
    a(f'''s_lshl_b32 s32, s17, 2
    s_add_u32 s32, s32, s16
    s_mul_i32 s32, s32, {32*1280}
    s_mul_i32 s33, s16, {16*3840}
    s_lshl_b32 s34, s18, 8
    s_add_u32 s33, s33, s34
    s_lshl_b32 s34, s16, 12''')
    def dma(stage):
        slot = stage & 3
        out = [f's_add_u32 m0, s34, {slot*16384}']
        out += ['s_nop 0']
        for e in range(4):
            out.append(f'buffer_load_dwordx4 v{vX+e}, s[4:7], s32 offen offset:{e*1024} lds')
        out.append(f's_add_u32 m0, s34, {65536 + slot*16384}')
        out.append(f's_add_u32 s32, s32, 128')
        for e in range(4):
            out.append(f'buffer_load_dwordx4 v{vW+e}, s[8:11], s33 offen offset:{e*1024} lds')
        out.append(f's_add_u32 s33, s33, {64*3840}')
        return out
    for st in range(3):
        a('\n'.join(dma(st)))
    a(f's_lshl_b32 s35, s16, 8\ns_add_u32 s35, s35, 65536')
    frag_addr(34, 35)
    XF = R(16, 4); WF = R(16, 4); SEL = R(4, 4); CSA = R(4, 4)
    sm = R(2); sq = R(2); hl = R(8)
    a(f'''v_lshrrev_b32 v{vt0}, 4, v0
    v_xor_b32 v{vt0}, v{vt0}, v0
    v_and_b32 v{vt0}, 1, v{vt0}
    v_sub_u32 v{vt0}, v{vt0}, 1
    v_and_b32 v{SEL}, 0x3f803f80, v{vt0}''')
    for k in range(1, 4):
        a(f'v_mov_b32 v{SEL+k}, v{SEL}')
    for k in range(4):
        a(f'v_mov_b32 v{CSA+k}, 0')
    for k in (sm, sm + 1, sq, sq + 1):
        a(f'v_mov_b32 v{k}, 0')
    for i in range(10):
        slot = i & 3
        a(f's_waitcnt vmcnt({8*min(2, 9-i)})\ns_barrier')
        rd = []
        for k in range(4):
            rd.append(f'ds_read_b128 {v(XF+4*k,4)}, v{vXr+k} offset:{slot*16384}')
            rd.append(f'ds_read_b64_tr_b16 {v(WF+4*k,2)}, v{vWr} offset:{slot*16384 + k*4096}')
            rd.append(f'ds_read_b64_tr_b16 {v(WF+4*k+2,2)}, v{vWr} offset:{slot*16384 + k*4096 + 1024}')
        a('\n'.join(rd))
        if i + 3 < 10:
            a('\n'.join(dma(i + 3)))
        for k in range(4):
            a(f's_waitcnt lgkmcnt({9 - 3*k})')
            a(f'v_mfma_f32_16x16x32_bf16 {v(CSA,4)}, {v(WF+4*k,4)}, {v(SEL,4)}, {v(CSA,4)}')
            for j in range(4):
                a(f'''v_and_b32 v{hl+2*j}, 0xffff0000, v{XF+4*k+j}
                v_lshlrev_b32 v{hl+2*j+1}, 16, v{XF+4*k+j}''')
            for j in range(4):
                a(f'''v_pk_add_f32 {v(sm,2)}, {v(sm,2)}, {v(hl+2*j,2)}
                v_pk_fma_f32 {v(sq,2)}, {v(hl+2*j,2)}, {v(hl+2*j,2)}, {v(sq,2)}''')
    a(f'''v_add_f32 v{sm}, v{sm}, v{sm+1}
    v_add_f32 v{sq}, v{sq}, v{sq+1}
    v_mov_b32 v{sm+1}, v{sm}
    v_mov_b32 v{sq+1}, v{sq}
    s_nop 1
    v_permlane32_swap_b32 v{sm}, v{sm+1}
    v_permlane32_swap_b32 v{sq}, v{sq+1}
    s_cmp_eq_u32 s19, 0
    s_cselect_b32 s36, {f32(QSCALE)}, 1.0
    v_add_f32 v{sm}, v{sm}, v{sm+1}
    v_add_f32 v{sq}, v{sq}, v{sq+1}
    v_mul_f32 v{sm}, {f32(1.0/D)}, v{sm}
    v_mul_f32 v{sq}, {f32(1.0/D)}, v{sq}
    v_fma_f32 v{sq}, -v{sm}, v{sm}, v{sq}
    v_max_f32 v{sq}, 0, v{sq}
    v_add_f32 v{sq}, {f32(EPS)}, v{sq}
    v_rsq_f32 v{sq}, v{sq}
    v_cmp_lt_u32 vcc, 31, v0
    v_mul_f32 v{sq}, s36, v{sq}
    v_mul_f32 v{sm}, -v{sm}, v{sq}
    s_lshl_b32 s36, s16, 7
    v_cndmask_b32 v{sq}, v{sq}, v{sm}, vcc
    v_lshlrev_b32 v{vt0}, 2, v{vr}
    v_lshl_add_u32 v{vt0}, v{vh}, 9, v{vt0}
    v_add_u32 v{vt0}, s36, v{vt0}
    ds_write_b32 v{vt0}, v{sq} offset:0''')
    a.L[-1] = f'  v_add_u32 v{vt0}, {STA}, v{vt0}'
    a(f'''ds_write_b32 v{vt0}, v{sq}
    v_and_b32 v{vt0}, 1, v0
    v_lshlrev_b32 v{vt0}, 6, v{vt0}
    v_and_b32 v{vt1}, 48, v0
    v_add3_u32 v{vt0}, v{vt0}, v{vt1}, s36
    v_add_u32 v{vt0}, {STC}, v{vt0}
    ds_write_b128 v{vt0}, {v(CSA,4)}
    s_waitcnt lgkmcnt(0)
    s_barrier
    s_endpgm''')
    hi_h = R.hi

    a.label('KA_MAIN')
    R.release(m0)
    srd(a, 12, 24, WS_SIZE)
    a('''s_lshr_b32 s32, s16, 1
    s_and_b32 s33, s16, 1
    s_lshl_b32 s34, s32, 13
    s_lshl_b32 s35, s33, 9
    s_add_u32 s35, s35, 65536''')
    frag_addr(34, 35)
    ACC = R(64, 4)
    XF = [R(8, 4), R(8, 4)]; WF = [R(8, 4), R(8, 4)]
    SA = R(16, 2)
    T = R(64, 4)
    for k in range(64):
        a(f'v_mov_b32 v{ACC+k}, 0')
    def acc(rtl, ctl): return ACC + 32 * rtl + 16 * ctl

    def mainloop(vtype):
        for n in range(41):
            i, k = n >> 2, n & 3
            b = n & 1
            slot = i & 3
            a('s_waitcnt lgkmcnt(0)')
            if k == 0:
                a('s_barrier')
            rd = []
            if n < 40:
                for t in range(2):
                    rd.append(f'ds_read_b128 {v(XF[b]+4*t,4)}, v{vXr+k} offset:{slot*16384 + t*4096}')
                    for u in range(2):
                        rd.append(f'ds_read_b64_tr_b16 {v(WF[b]+4*t+2*u,2)}, v{vWr} offset:{slot*16384 + k*4096 + u*1024 + t*256}')
            mm = []
            if n > 0:
                p = b ^ 1
                for rtl, ctl in ((0, 0), (0, 1), (1, 1), (1, 0)):
                    x, w = v(XF[p] + 4 * rtl, 4), v(WF[p] + 4 * ctl, 4)
                    A_, B_ = (x, w) if vtype else (w, x)
                    mm.append(f'v_mfma_f32_32x32x16_bf16 {v(acc(rtl,ctl),16)}, {A_}, {B_}, {v(acc(rtl,ctl),16)}')
            if n == 40:
                rd = epi_reads(vtype)
            seq = []
            if mm:
                seq = [mm[0]] + rd[0:3] + [mm[1]] + rd[3:6] + [mm[2]] + rd[6:] + [mm[3]]
            else:
                seq = rd
            a('\n'.join(seq))

    def epi_reads(vtype):
        rd = []
        if not vtype:
            a(f'''v_lshlrev_b32 v{vt0}, 4, v{vh}
            s_lshl_b32 s36, s33, 8
            s_add_u32 s36, s36, {STC}
            v_add_u32 v{vt0}, s36, v{vt0}
            s_lshl_b32 s36, s32, 8
            s_add_u32 s36, s36, {STA}
            v_lshl_add_u32 v{vt1}, v{vr}, 2, s36''')
            for rtl in range(2):
                rd.append(f'ds_read_b32 v{T+32+2*rtl}, v{vt1} offset:{rtl*128}')
                rd.append(f'ds_read_b32 v{T+33+2*rtl}, v{vt1} offset:{512 + rtl*128}')
            for ctl in range(2):
                for j in range(4):
                    rd.append(f'ds_read_b128 {v(T+16*ctl+4*j,4)}, v{vt0} offset:{ctl*128 + j*32}')
        else:
            a(f'''v_lshlrev_b32 v{vt0}, 4, v{vh}
            s_lshl_b32 s36, s32, 8
            s_add_u32 s36, s36, {STA}
            v_add_u32 v{vt0}, s36, v{vt0}
            s_lshl_b32 s36, s33, 8
            s_add_u32 s36, s36, {STC}
            v_lshl_add_u32 v{vt1}, v{vr}, 2, s36''')
            for ctl in range(2):
                rd.append(f'ds_read_b32 v{SA+4+ctl}, v{vt1} offset:{ctl*128}')
            for rtl in range(2):
                for j in range(4):
                    rd.append(f'ds_read_b128 {v(T+16*rtl+4*j,4)}, v{vt0} offset:{rtl*128 + j*32}')
                    rd.append(f'ds_read_b128 {v(T+32+16*rtl+4*j,4)}, v{vt0} offset:{512 + rtl*128 + j*32}')
        return rd

    a('s_cmp_eq_u32 s19, 2\ns_cbranch_scc1 KA_V')
    a(f'''s_cmp_eq_u32 s19, 0
    s_mov_b32 s36, {KV_HS}
    s_mov_b32 s37, {KV_GS}
    s_mov_b32 s38, {KV}
    s_cmov_b32 s36, {Q_HS}
    s_cmov_b32 s37, {Q_GS}
    s_cmov_b32 s38, {QB}
    s_cselect_b32 s39, 0, 12
    s_mul_i32 s37, s37, s17
    s_add_u32 s38, s38, s37
    v_lshrrev_b32 v{T}, 1, v{vr}
    v_xor_b32 v{T}, v{T}, v{vr}
    v_bfe_u32 v{T}, v{T}, 2, 1
    v_mul_u32_u24 v{T}, s39, v{T}
    v_xor_b32 v{T}, v{T}, v{vr}
    v_lshl_add_u32 v{T}, v{T}, 4, s38
    s_lshl_b32 s37, s26, 5
    s_lshl_b32 s38, s33, 4
    s_add_u32 s37, s37, s38
    v_add_u32 v{T+1}, s37, v{vh}
    s_lshl_b32 s37, s32, 11
    s_lshl_b32 s38, s32, 9
    s_add_u32 s38, s38, 4096
    v_mov_b32 v{T+6}, s38
    v_mov_b32 v{T+7}, 1024
    v_mov_b32 v{T+8}, 8''')
    for ctl in range(2):
        for j in range(4):
            d = SA + 2 * (4 * ctl + j)
            a(f'''v_add_u32 v{T+2}, {8*ctl + 2*j}, v{T+1}
            v_mul_u32_u24 v{T+3}, 205, v{T+2}
            v_lshrrev_b32 v{T+3}, 10, v{T+3}
            v_mul_u32_u24 v{T+4}, 5, v{T+3}
            v_sub_u32 v{T+2}, v{T+2}, v{T+4}
            v_cmp_eq_u32 vcc, 4, v{T+2}
            v_lshrrev_b32 v{T+4}, 1, v{T+2}
            v_and_b32 v{T+2}, 1, v{T+2}
            v_lshlrev_b32 v{T+2}, 3, v{T+2}
            v_lshl_add_u32 v{T+2}, v{T+4}, 9, v{T+2}
            v_add_u32 v{T+2}, s37, v{T+2}
            v_cndmask_b32 v{T+2}, v{T+2}, v{T+6}, vcc
            v_cndmask_b32 v{T+4}, v{T+7}, v{T+8}, vcc
            v_mad_u32_u24 v{T+3}, v{T+3}, s36, v{T}
            v_add_u32 v{d}, v{T+2}, v{T+3}
            v_add_u32 v{d+1}, v{d}, v{T+4}''')
    mainloop(False)
    a('s_waitcnt lgkmcnt(0)\ns_nop 7')
    Y = T + 40
    n = 0
    for rtl in range(2):
        ab = v(T + 32 + 2 * rtl, 2)
        for ctl in range(2):
            for j in range(4):
                y = Y + 6 * (n % 4); n += 1
                for z in range(2):
                    a(f'v_pk_mul_f32 {v(y+2*z,2)}, {v(T+16*ctl+4*j+2*z,2)}, {ab} op_sel:[0,1] op_sel_hi:[1,1]')
                for z in range(2):
                    a(f'v_pk_fma_f32 {v(y+2*z,2)}, {v(acc(rtl,ctl)+4*j+2*z,2)}, {ab}, {v(y+2*z,2)} op_sel_hi:[1,0,1]')
                a(f'''v_cvt_pk_bf16_f32 v{y+4}, v{y}, v{y+1}
                v_cvt_pk_bf16_f32 v{y+5}, v{y+2}, v{y+3}
                buffer_store_dwordx2 {v(y+4,2)}, v{SA + 2*(4*ctl+j) + rtl}, s[12:15], 0 offen''')
    a('s_endpgm')

    a.label('KA_V')
    a(f'''s_mul_i32 s36, s17, {KV_GS}
    s_add_u32 s36, s36, {KV + 5120}
    s_mul_i32 s37, s32, {2*1344}
    s_add_u32 s37, s37, s36
    s_lshl_b32 s38, s26, 7
    s_lshl_b32 s39, s33, 6
    s_add_u32 s39, s39, s38
    s_mov_b32 s40, {KV_HS}
    v_mul_u32_u24 v{T}, 336, v{vh}
    v_add_u32 v{T}, s37, v{T}''')
    for ctl in range(2):
        a(f'''v_add_u32 v{T+1}, s39, v{vr}
        v_add_u32 v{T+1}, {32*ctl}, v{T+1}
        v_mul_u32_u24 v{T+2}, 3277, v{T+1}
        v_lshrrev_b32 v{T+2}, 16, v{T+2}
        v_mul_u32_u24 v{T+3}, 20, v{T+2}
        v_sub_u32 v{T+1}, v{T+1}, v{T+3}
        v_lshl_add_u32 v{T+1}, v{T+1}, 4, v{T}
        v_mad_u32_u24 v{SA+ctl}, v{T+2}, s40, v{T+1}''')
    a(f'''s_cmp_ge_u32 s16, 2
    s_cbranch_scc1 KA_V1
    s_add_u32 s41, s38, 19
    s_mul_i32 s41, s41, 3277
    s_lshr_b32 s41, s41, 16
    s_add_u32 s42, s38, 147
    s_mul_i32 s42, s42, 3277
    s_lshr_b32 s42, s42, 16
    s_lshl_b32 s43, s16, 2
    s_add_u32 s41, s41, s43
    v_lshrrev_b32 v{T+1}, 4, v0
    v_add_u32 v{T+1}, s41, v{T+1}
    v_and_b32 v{T+2}, 15, v0
    v_mul_u32_u24 v{T+2}, 336, v{T+2}
    v_cmp_gt_u32 vcc, s42, v{T+1}
    v_mad_u32_u24 v{T+2}, v{T+1}, s40, v{T+2}
    s_add_u32 s36, s36, 320
    v_add_u32 v{T+2}, s36, v{T+2}
    v_mov_b32 v{T+3}, {OOB}
    v_cndmask_b32 v{T+2}, v{T+3}, v{T+2}, vcc
    v_mov_b32 v{T+4}, 0x3f803f80
    v_mov_b32 v{T+5}, v{T+4}
    v_mov_b32 v{T+6}, v{T+4}
    v_mov_b32 v{T+7}, v{T+4}
    buffer_store_dwordx4 {v(T+4,4)}, v{T+2}, s[12:15], 0 offen''')
    a.label('KA_V1')
    mainloop(True)
    a('s_waitcnt lgkmcnt(0)\ns_nop 7')
    Y = XF[0]
    n = 0
    for rtl in range(2):
        for ctl in range(2):
            for t in range(2):
                y = Y + 12 * (n % 2); n += 1
                for z in range(4):
                    q = 16 * rtl + 8 * t + 2 * z
                    a(f'v_pk_mul_f32 {v(y+2*z,2)}, {v(T+32+q,2)}, {v(SA+4,2)} op_sel:[0,{ctl}] op_sel_hi:[1,{ctl}]')
                for z in range(4):
                    q = 16 * rtl + 8 * t + 2 * z
                    a(f'v_pk_fma_f32 {v(y+2*z,2)}, {v(acc(rtl,ctl)+8*t+2*z,2)}, {v(T+q,2)}, {v(y+2*z,2)}')
                for z in range(4):
                    a(f'v_cvt_pk_bf16_f32 v{y+8+z}, v{y+2*z}, v{y+2*z+1}')
                a(f'buffer_store_dwordx4 {v(y+8,4)}, v{SA+ctl}, s[12:15], 0 offen offset:{rtl*1344 + t*672}')
    a('s_endpgm')
    hi_m = R.hi

    a.label('KA_COLSUM')
    R = Regs(1)
    vo, t0, t1 = R(), R(), R()
    AC = R(8, 2); LD = R(160, 4); U = R(2)
    a(f'''s_sub_u32 s17, s17, 30
    s_waitcnt lgkmcnt(0)
    s_cmp_eq_u32 s17, 0
    s_cselect_b32 s4, s28, s30
    s_cselect_b32 s5, s29, s31
    s_mov_b32 s6, {D*F*2}
    s_mov_b32 s7, 0x20000''')
    srd(a, 12, 24, WS_SIZE)
    a(f'''v_cmp_lt_u32 vcc, 26, v0
    s_mul_i32 s32, s16, {80*3456}
    s_mul_i32 s33, s3, 432
    s_add_u32 s32, s32, s33
    v_cndmask_b32 v{t0}, 0, 1, vcc
    v_mul_u32_u24 v{t1}, {3456 - 27*16}, v{t0}
    v_lshl_add_u32 v{vo}, v0, 4, v{t1}
    v_cmp_lt_u32 vcc, 53, v0
    v_mov_b32 v{t1}, {OOB}
    s_nop 0
    v_cndmask_b32 v{vo}, v{vo}, v{t1}, vcc''')
    for i in range(40):
        a(f'buffer_load_dwordx4 {v(LD+4*i,4)}, v{vo}, s[4:7], s32 offen\ns_add_u32 s32, s32, {2*3456}')
    for k in range(8):
        a(f'v_mov_b32 v{AC+k}, 0')
    for i in range(40):
        a(f's_waitcnt vmcnt({39-i})')
        for j in range(4):
            a(f'''v_lshlrev_b32 v{U}, 16, v{LD+4*i+j}
            v_and_b32 v{U+1}, 0xffff0000, v{LD+4*i+j}
            v_pk_add_f32 {v(AC+2*j,2)}, {v(AC+2*j,2)}, {v(U,2)}''')
    a(f'''s_mul_i32 s33, s16, {64*32}
    v_lshl_add_u32 v{t0}, v0, 5, s33
    ds_write_b128 v{t0}, {v(AC,4)}
    ds_write_b128 v{t0}, {v(AC+4,4)} offset:16
    s_waitcnt lgkmcnt(0)
    s_barrier
    s_lshl_b32 s33, s16, 8
    v_lshl_add_u32 v{t0}, v0, 2, s33''')
    for w in range(8):
        for sub in range(2):
            a(f'ds_read_b32 v{LD+2*w+sub}, v{t0} offset:{w*2048 + sub*27*32}')
    a(f'''s_mul_i32 s34, s17, {F*4}
    s_mul_i32 s35, s3, {216*4}
    s_add_u32 s34, s34, s35
    s_add_u32 s34, s34, {CS}
    v_cmp_gt_u32 vcc, {216*4}, v{t0}
    v_mov_b32 v{t1}, {OOB}
    s_nop 0
    v_cndmask_b32 v{t0}, v{t1}, v{t0}, vcc
    s_waitcnt lgkmcnt(0)''')
    for k in range(1, 16):
        a(f'v_add_f32 v{LD}, v{LD}, v{LD+k}')
    a(f'buffer_store_dword v{LD}, v{t0}, s[12:15], s34 offen')
    a.label('KA_END')
    a('s_endpgm')
    return max(hi_h, hi_m, R.hi)
```

```python
from common import *

SLOT = 24576
LDS_B = 4 * SLOT
CHUNK = 2 * KV_GS

def gen_B(a, name):
    kernel_begin(a, name)
    a('''s_cmp_ge_u32 s2, 256
    s_cbranch_scc1 KB_END
    s_load_dwordx2 s[24:25], s[0:1], 72''')
    wave_id(a, 16)
    a('''s_and_b32 s17, s2, 7
    s_lshl_b32 s17, s17, 2
    s_bfe_u32 s18, s2, 0x20003
    s_add_u32 s17, s17, s18
    s_lshr_b32 s18, s2, 5
    s_lshl_b32 s18, s18, 3
    s_add_u32 s18, s18, s16''')
    R = Regs(1)
    vr, vh, vt0, vt1 = R(), R(), R(), R()
    vD, vK, vV, vKn, vVn, vK0, vV0, vIdx = [R() for _ in range(8)]
    Q1 = R(4, 4); Q2 = R(10, 2); NM = R(16, 4)
    Sb = [R(16, 4), R(16, 4)]; O = R(16, 4)
    K1 = [R(4, 4), R(4, 4)]; K2 = [R(4, 4), R(4, 4)]
    V0 = [R(4, 4), R(4, 4)]; V1 = [R(4, 4), R(4, 4)]
    a(f'''v_and_b32 v{vr}, 31, v0
    v_lshrrev_b32 v{vh}, 5, v0
    s_mul_i32 s19, s17, {Q_HS}
    s_lshr_b32 s20, s18, 2
    s_mul_i32 s20, s20, {Q_GS}
    s_add_u32 s19, s19, s20
    s_and_b32 s20, s18, 3
    s_lshl_b32 s20, s20, 10
    s_add_u32 s20, s20, s19
    s_bfe_u32 s21, s18, 0x10001
    s_lshl_b32 s21, s21, 9
    s_and_b32 s22, s18, 1
    s_lshl_b32 s22, s22, 3
    s_add_u32 s21, s21, s22
    s_add_u32 s21, s21, s19
    s_add_u32 s21, s21, {QB + 4096}
    v_lshlrev_b32 v{vK0}, 4, v0
    v_lshlrev_b32 v{vt0}, 4, v{vr}
    s_mul_i32 s26, s16, 3072
    v_add_u32 v{vD}, s26, v{vK0}
    s_mul_i32 s27, s17, {KV_HS}
    s_add_u32 s27, s27, {KV}
    s_mov_b32 s28, s27
    s_waitcnt lgkmcnt(0)''')
    srd(a, 12, 24, WS_SIZE)
    if QB:
        a(f's_add_u32 s20, s20, {QB}')
    a(f'''buffer_load_dwordx4 {v(Q1,4)}, v{vK0}, s[12:15], s20 offen
    buffer_load_dwordx2 {v(Q2+2,2)}, v{vt0}, s[12:15], s21 offen''')
    def dma():
        return [f'buffer_load_dwordx4 v{vD}, s[12:15], s27 offen offset:{e*1024} lds' for e in range(3)] + [f's_add_u32 s27, s27, {CHUNK}']
    for c in range(3):
        a(f's_add_u32 m0, s26, {c*SLOT}\ns_nop 0')
        a('\n'.join(dma()))
    a(f'''v_mul_u32_u24 v{vV0}, 336, v{vh}
    v_add_u32 v{vV0}, v{vV0}, v{vt0}
    v_mov_b32 v{vIdx}, 0xdddd
    v_mov_b32 v{vK}, v{vK0}
    v_mov_b32 v{vV}, v{vV0}
    v_add_u32 v{vKn}, {SLOT}, v{vK0}
    v_add_u32 v{vVn}, {SLOT}, v{vV0}
    v_sub_u32 v{vt1}, 0, v{vh}''')
    for k in range(16):
        a(f'v_mov_b32 v{O+k}, 0')
    for k in range(8, 16):
        a(f'v_mov_b32 v{Sb[1]+k}, 0')
    for k in range(4):
        a(f'v_mov_b32 v{V1[1]+k}, 0')
    for k in (0, 1, 4, 5, 8, 9):
        a(f'v_mov_b32 v{Q2+k}, 0')
    a(f'''s_waitcnt vmcnt(9)
    v_and_b32 v{Q2+6}, v{Q2+2}, v{vt1}
    v_and_b32 v{Q2+7}, v{Q2+3}, v{vt1}
    v_xor_b32 v{Q2+2}, v{Q2+2}, v{Q2+6}
    v_xor_b32 v{Q2+3}, v{Q2+3}, v{Q2+7}''')
    def q2(tl): return v(Q2 + (2, 0, 6, 4)[tl], 4)
    def koff(i): return (i >> 2) * KV_GS + (i & 3) * 1024
    def k2off(g): return g * KV_GS + 4096
    def voff(i, t): return (i >> 2) * KV_GS + 5120 + (i & 3) * 1344 + t * 672
    a(f'''s_waitcnt vmcnt(6)
    s_barrier
    ds_read_b128 {v(K1[0],4)}, v{vK} offset:{koff(0)}
    ds_read_b128 {v(K2[0],4)}, v{vK} offset:{k2off(0)}
    ds_read_b128 {v(K1[1],4)}, v{vK} offset:{koff(1)}
    ds_read_b128 {v(V0[0],4)}, v{vV} offset:{voff(0,0)}
    s_waitcnt lgkmcnt(2)
    v_mfma_f32_32x32x16_bf16 {v(Sb[0],16)}, {v(K1[0],4)}, {v(Q1,4)}, 0
    v_mfma_f32_32x32x16_bf16 {v(Sb[0],16)}, {v(K2[0],4)}, {q2(0)}, {v(Sb[0],16)}
    s_nop 15''')
    a(f'v_max3_f32 v{vt0}, v{Sb[0]}, v{Sb[0]+1}, v{Sb[0]+2}')
    for k in range(3, 15, 2):
        a(f'v_max3_f32 v{vt0}, v{vt0}, v{Sb[0]+k}, v{Sb[0]+k+1}')
    a(f'''v_max_f32 v{vt0}, v{vt0}, v{Sb[0]+15}
    v_mov_b32 v{vt1}, v{vt0}
    s_nop 1
    v_permlane32_swap_b32 v{vt0}, v{vt1}
    v_max_f32 v{vt0}, v{vt0}, v{vt1}''')
    for k in range(16):
        a(f'v_sub_f32 v{NM+k}, 0, v{vt0}')
    a(f'''s_mov_b32 s29, 0
    s_mov_b32 s30, {SLOT}
    v_mfma_f32_32x32x16_bf16 {v(Sb[0],16)}, {v(K1[0],4)}, {v(Q1,4)}, {v(NM,16)}
    v_mfma_f32_32x32x16_bf16 {v(Sb[0],16)}, {v(K2[0],4)}, {q2(0)}, {v(Sb[0],16)}
    s_nop 7''')
    a('.p2align 3')
    a.label('KB_LOOP')
    for u in range(8):
        cur, nxt = u & 1, (u + 1) & 1
        e = lambda j: f'v_exp_f32 v{Sb[cur]+j}, v{Sb[cur]+j}'
        a('s_waitcnt lgkmcnt(0)')
        if u == 6:
            a(f'''s_waitcnt vmcnt(3)
            s_cmp_lt_u32 s29, 6
            s_cbranch_scc1 KB_W
            s_waitcnt vmcnt(0)''')
            a.label('KB_W')
            a(f'''s_barrier
            s_cmp_ge_u32 s29, 5
            s_cbranch_scc1 KB_ND
            s_add_u32 s31, s29, 3
            s_and_b32 s31, s31, 3
            s_mul_i32 s31, s31, {SLOT}
            s_add_u32 m0, s31, s26
            s_nop 0''')
            a('\n'.join(dma()))
            a.label('KB_ND')
        rd = [f'ds_read_b128 {v(V1[cur],4)}, v{vV} offset:{voff(u,1)}']
        rd.append(f'ds_read_b128 {v(K1[cur],4)}, v{vK if u < 6 else vKn} offset:{koff((u+2) & 7)}')
        rd.append(f'ds_read_b128 {v(V0[nxt],4)}, v{vV if u < 7 else vVn} offset:{voff((u+1) & 7, 0)}')
        if u == 2:
            rd.append(f'ds_read_b128 {v(K2[1],4)}, v{vK} offset:{k2off(1)}')
        if u == 6:
            rd.append(f'ds_read_b128 {v(K2[0],4)}, v{vKn} offset:{k2off(0)}')
        pv1 = f'v_smfmac_f32_32x32x32_bf16 {v(O,16)}, {v(V1[nxt],4)}, {v(Sb[nxt]+8,8)}, v{vIdx}'
        pv0 = f'v_smfmac_f32_32x32x32_bf16 {v(O,16)}, {v(V0[cur],4)}, {v(Sb[cur],8)}, v{vIdx}'
        m1 = f'v_mfma_f32_32x32x16_bf16 {v(Sb[nxt],16)}, {v(K1[nxt],4)}, {v(Q1,4)}, {v(NM,16)}'
        m2 = f'v_mfma_f32_32x32x16_bf16 {v(Sb[nxt],16)}, {v(K2[((u+1)>>2)&1],4)}, {q2((u+1)&3)}, {v(Sb[nxt],16)}'
        seq = rd + [pv1, e(0), e(1), e(2), e(3), m1, e(4), e(5), e(6), e(7), m2, e(8), e(9), e(10), e(11), pv0, e(12), e(13), e(14), e(15)]
        a('\n'.join(seq))
    a(f'''s_add_u32 s29, s29, 1
    s_add_u32 s31, s29, 1
    s_and_b32 s31, s31, 3
    s_mul_i32 s30, s31, {SLOT}
    v_mov_b32 v{vK}, v{vKn}
    v_mov_b32 v{vV}, v{vVn}
    v_add_u32 v{vKn}, s30, v{vK0}
    v_add_u32 v{vVn}, s30, v{vV0}
    s_cmp_lt_u32 s29, 8
    s_cbranch_scc1 KB_LOOP
    s_waitcnt lgkmcnt(0)
    v_smfmac_f32_32x32x32_bf16 {v(O,16)}, {v(V1[1],4)}, {v(Sb[1]+8,8)}, v{vIdx}''')
    T = Sb[0]
    a(f'''s_mul_i32 s19, s17, 5
    v_add_u32 v{vt0}, s19, v{vh}
    s_mul_i32 s20, s18, 40960
    s_add_u32 s20, s20, {OB}
    v_lshl_add_u32 v{vt1}, v{vr}, 4, s20''')
    for k in range(3):
        a(f'''v_add_u32 v{T+k}, {2*k}, v{vt0}
        v_and_b32 v{T+4}, 1, v{T+k}
        v_lshrrev_b32 v{T+k}, 1, v{T+k}
        v_lshl_add_u32 v{T+k}, v{T+k}, 9, v{vt1}
        v_lshl_add_u32 v{T+k}, v{T+4}, 3, v{T+k}''')
    a(f'''v_mul_u32_u24 v{T+4}, {OOB >> 8}, v{vh}
    v_lshl_add_u32 v{T+2}, v{T+4}, 8, v{T+2}''')
    a.label('KB_FIN')
    a(f'''v_mov_b32 v{T+4}, v{O+8}
    v_mov_b32 v{T+5}, v{O+8}
    v_mul_f32 v{T+6}, 0, v{O}
    v_mul_f32 v{T+7}, 0, v{O+8}
    v_permlane32_swap_b32 v{T+4}, v{T+5}''')
    for k in range(1, 8):
        a(f'v_fma_f32 v{T+6}, 0, v{O+k}, v{T+6}')
    for k in range(9, 12):
        a(f'v_fma_f32 v{T+7}, 0, v{O+k}, v{T+7}')
    a(f'''v_subrev_u32 v{T+4}, 1, v{vh}
    v_and_b32 v{T+7}, v{T+7}, v{T+4}
    v_add_f32 v{T+6}, v{T+6}, v{T+7}
    v_add_f32 v{T+6}, v{T+6}, v{T+5}
    v_cmp_gt_f32 vcc, {f32(2.0**100)}, v{T+6}
    v_rcp_f32 v{T+4}, v{T+5}
    s_nop 3
    s_cmp_eq_u64 vcc, -1
    s_cbranch_scc0 KB_SLOW''')
    a.label('KB_OUT')
    for k in range(6):
        a(f'v_pk_mul_f32 {v(O+2*k,2)}, {v(O+2*k,2)}, {v(T+4,2)} op_sel_hi:[1,0]')
    for k in range(6):
        a(f'v_cvt_pk_bf16_f32 v{T+8+k}, v{O+2*k}, v{O+2*k+1}')
    for k in range(3):
        a(f'buffer_store_dwordx2 {v(T+8+2*k,2)}, v{T+k}, s[12:15], 0 offen')
    a('s_endpgm')

    a.label('KB_SLOW')
    Sx = Sb[1]; M = NM;
    for k in range(16):
        a(f'v_mov_b32 v{O+k}, 0')
    a(f'''v_mov_b32 v{M}, 0xff800000
    v_mov_b32 v{K2[0]+2}, 0
    v_mov_b32 v{K2[0]+3}, 0
    v_lshlrev_b32 v{M+4}, 4, v{vr}
    s_mov_b32 s29, 0''')
    a.label('KB_SL')
    a(f'''s_lshr_b32 s30, s29, 2
    s_mul_i32 s30, s30, {KV_GS}
    s_add_u32 s30, s30, s28
    s_and_b32 s31, s29, 3
    s_lshl_b32 s19, s31, 10
    s_add_u32 s19, s19, s30
    s_lshr_b32 s20, s31, 1
    s_lshl_b32 s20, s20, 9
    s_and_b32 s21, s31, 1
    s_lshl_b32 s21, s21, 3
    s_add_u32 s20, s20, s21
    s_add_u32 s20, s20, s30
    s_add_u32 s20, s20, 4096
    s_mul_i32 s21, s31, 1344
    s_add_u32 s21, s21, s30
    s_add_u32 s21, s21, 5120
    buffer_load_dwordx4 {v(K1[0],4)}, v{vK0}, s[12:15], s19 offen
    buffer_load_dwordx2 {v(K2[0],2)}, v{M+4}, s[12:15], s20 offen
    buffer_load_dwordx4 {v(V0[0],4)}, v{vV0}, s[12:15], s21 offen
    buffer_load_dwordx4 {v(V1[0],4)}, v{vV0}, s[12:15], s21 offen offset:672
    s_waitcnt vmcnt(0)
    v_mfma_f32_32x32x16_bf16 {v(Sx,16)}, {v(K1[0],4)}, {v(Q1,4)}, 0
    v_mfma_f32_32x32x16_bf16 {v(Sx,16)}, {v(K2[0],4)}, {q2(0)}, {v(Sx,16)}
    s_nop 15
    v_max3_f32 v{M+1}, v{Sx}, v{Sx+1}, v{M}''')
    for k in range(2, 16, 2):
        a(f'v_max3_f32 v{M+1}, v{M+1}, v{Sx+k}, v{Sx+k+1}')
    a(f'''v_mov_b32 v{M+2}, v{M+1}
    s_nop 1
    v_permlane32_swap_b32 v{M+1}, v{M+2}
    v_max_f32 v{M+1}, v{M+1}, v{M+2}
    v_sub_f32 v{M+2}, v{M}, v{M+1}
    v_exp_f32 v{M+2}, v{M+2}
    v_mov_b32 v{M}, v{M+1}''')
    for k in range(16):
        a(f'v_sub_f32 v{Sx+k}, v{Sx+k}, v{M}')
    for k in range(16):
        a(f'v_exp_f32 v{Sx+k}, v{Sx+k}')
    for k in range(16):
        a(f'v_mul_f32 v{O+k}, v{O+k}, v{M+2}')
    a(f'''s_nop 1
    v_smfmac_f32_32x32x32_bf16 {v(O,16)}, {v(V0[0],4)}, {v(Sx,8)}, v{vIdx}
    v_smfmac_f32_32x32x32_bf16 {v(O,16)}, {v(V1[0],4)}, {v(Sx+8,8)}, v{vIdx}
    s_add_u32 s29, s29, 1
    s_cmp_lt_u32 s29, 64
    s_cbranch_scc1 KB_SL
    s_nop 15
    v_mov_b32 v{T+4}, v{O+8}
    v_mov_b32 v{T+5}, v{O+8}
    s_nop 1
    v_permlane32_swap_b32 v{T+4}, v{T+5}
    s_nop 1
    v_rcp_f32 v{T+4}, v{T+5}
    s_nop 1
    s_branch KB_OUT''')
    a.label('KB_END')
    a('s_endpgm')
    return R.hi
```

```python
from common import *

GSLOT = 24576
GNS = 6
LDS_G = GNS * GSLOT
LOG2E = math.log2(math.e)

def gen_G(a, name):
    kernel_begin(a, name)
    a('''s_cmp_ge_u32 s2, 256
    s_cbranch_scc1 KG_END
    s_load_dwordx4 s[20:23], s[0:1], 32
    s_load_dwordx2 s[24:25], s[0:1], 72''')
    wave_id(a, 16)
    a('''s_bfe_u32 s17, s2, 0x10002
    s_lshl_b32 s17, s17, 3
    s_bfe_u32 s18, s2, 0x30003
    s_add_u32 s17, s17, s18
    s_and_b32 s18, s2, 3
    s_lshl_b32 s18, s18, 2
    s_lshr_b32 s19, s2, 6
    s_add_u32 s18, s18, s19
    s_mul_i32 s18, s18, 7
    s_min_u32 s18, s18, 101
    s_and_b32 s19, s18, 1''')
    R = Regs(1)
    vr, vg, vt0, vt1 = R(), R(), R(), R()
    vL, vW, vX0, vE0, vO0, vX, vE, vO = [R() for _ in range(8)]
    ACC = R(64, 4)
    XF = [R(8, 4), R(8, 4)]; WF = [R(32, 4), R(32, 4)]
    STT = R(8, 4)
    a(f'''v_and_b32 v{vr}, 15, v0
    v_lshrrev_b32 v{vg}, 4, v0
    v_lshlrev_b32 v{vL}, 4, v0
    s_and_b32 s26, s16, 3
    s_lshr_b32 s27, s16, 2
    v_bfe_u32 v{vt0}, v0, 2, 2
    v_mul_u32_u24 v{vt0}, 3456, v{vt0}
    v_lshl_add_u32 v{vt0}, v{vg}, 6, v{vt0}
    s_and_b32 s28, s16, 2
    v_xor_b32 v{vt1}, s28, v0
    v_and_b32 v{vt1}, 3, v{vt1}
    v_lshl_add_u32 v{vW}, v{vt1}, 4, v{vt0}
    s_lshl_b32 s32, s17, 2
    s_lshr_b32 s33, s16, 1
    s_add_u32 s32, s32, s33
    s_mul_i32 s32, s32, 40960
    s_and_b32 s33, s16, 1
    s_lshl_b32 s33, s33, 10
    s_add_u32 s32, s32, s33
    s_add_u32 s32, s32, {HB}
    s_mul_i32 s33, s16, {4*3456}
    s_lshr_b32 s34, s18, 1
    s_lshl_b32 s34, s34, 6
    s_add_u32 s33, s33, s34
    s_lshl_b32 s34, s16, 10
    s_lshl_b32 s35, s16, 11
    s_add_u32 s35, s35, 8192
    s_add_u32 s37, s35, 1024
    v_lshlrev_b32 v{vt0}, 6, v{vr}
    v_lshl_add_u32 v{vt0}, v{vg}, 4, v{vt0}
    s_lshl_b32 s28, s17, 2
    s_add_u32 s28, s28, s26
    s_lshl_b32 s29, s28, 11
    s_add_u32 s29, s29, {ST}
    v_lshlrev_b32 v{vt1}, 4, v{vg}
    s_lshl_b32 s30, s27, 2
    s_add_u32 s30, s30, s18
    s_lshl_b32 s31, s30, 6
    s_add_u32 s31, s31, {CS}
    s_add_u32 s39, s31, {F*4}
    s_waitcnt lgkmcnt(0)''')
    srd(a, 12, 24, WS_SIZE)
    srd(a, 4, 20, D * F * 2)
    srd(a, 8, 22, D * F * 2)
    def dma(ring):
        return [f's_add_u32 m0, s34, {ring}', 's_nop 0',
                f'buffer_load_dwordx4 v{vL}, s[12:15], s32 offen lds',
                f's_add_u32 m0, s35, {ring}', 's_add_u32 s32, s32, 2048',
                f'buffer_load_dwordx4 v{vW}, s[4:7], s33 offen lds',
                f's_add_u32 m0, s37, {ring}', 's_nop 0',
                f'buffer_load_dwordx4 v{vW}, s[8:11], s33 offen lds',
                f's_add_u32 s33, s33, {32*3456}']
    PD = GNS - 1
    a('\n'.join(dma(0)))
    CSR = WF[0]
    for x in range(2):
        a(f'buffer_load_dwordx4 {v(STT+4*x,4)}, v{vt0}, s[12:15], s29 offen offset:{x*1024}')
    for j in range(4):
        a(f'buffer_load_dwordx4 {v(CSR+8*j,4)}, v{vt1}, s[12:15], s31 offen offset:{j*64}')
        a(f'buffer_load_dwordx4 {v(CSR+8*j+4,4)}, v{vt1}, s[12:15], s39 offen offset:{j*64}')
    for st in range(1, PD):
        a('\n'.join(dma(st * GSLOT)))
    for k in range(8):
        a(f'v_mov_b32 v{XF[1]+k}, 0')
    for k in range(32):
        a(f'v_mov_b32 v{WF[1]+k}, 0')
    a(f'''s_lshl_b32 s40, s26, 11
    v_lshlrev_b32 v{vX0}, 9, v{vg}
    v_lshl_add_u32 v{vX0}, v{vr}, 4, v{vX0}
    v_add_u32 v{vX0}, s40, v{vX0}
    v_lshlrev_b32 v{vt0}, 12, v{vg}
    v_bfe_u32 v{vE0}, v0, 2, 2
    v_lshl_add_u32 v{vt0}, v{vE0}, 6, v{vt0}
    v_and_b32 v{vE0}, 3, v0
    v_lshl_add_u32 v{vt0}, v{vE0}, 3, v{vt0}
    v_xor_b32 v{vt1}, s19, v{vg}
    v_and_b32 v{vt1}, 1, v{vt1}
    v_lshl_add_u32 v{vE0}, v{vt1}, 5, v{vt0}
    s_lshl_b32 s40, s27, 9
    s_add_u32 s40, s40, 8192
    v_add_u32 v{vE0}, s40, v{vE0}
    s_lshl_b32 s40, s19, 8
    v_xor_b32 v{vO0}, 32, v{vE0}
    v_add_u32 v{vO0}, s40, v{vO0}
    v_mov_b32 v{vX}, v{vX0}
    v_mov_b32 v{vE}, v{vE0}
    v_mov_b32 v{vO}, v{vO0}
    s_waitcnt vmcnt({3*(PD-1) + 8})''')
    for x in range(2):
        b = STT + 4 * x
        a(f'''v_pk_add_f32 {v(b,2)}, {v(b,2)}, {v(b+2,2)}
        s_nop 0
        v_mov_b32 v{b+2}, v{b}
        v_mov_b32 v{b+3}, v{b+1}
        s_nop 1
        v_permlane16_swap_b32 v{b}, v{b+2}
        v_permlane16_swap_b32 v{b+1}, v{b+3}
        v_pk_add_f32 {v(b,2)}, {v(b,2)}, {v(b+2,2)}
        s_nop 0
        v_mov_b32 v{b+2}, v{b}
        v_mov_b32 v{b+3}, v{b+1}
        s_nop 1
        v_permlane32_swap_b32 v{b}, v{b+2}
        v_permlane32_swap_b32 v{b+1}, v{b+3}
        v_pk_add_f32 {v(b,2)}, {v(b,2)}, {v(b+2,2)}
        v_mul_f32 v{b}, {f32(-1.0/D)}, v{b}
        v_mul_f32 v{b+1}, {f32(1.0/D)}, v{b+1}
        v_fma_f32 v{b+2}, -v{b}, v{b}, v{b+1}
        v_max_f32 v{b+2}, 0, v{b+2}
        v_add_f32 v{b+2}, {f32(EPS)}, v{b+2}
        v_rsq_f32 v{b+1}, v{b+2}
        s_nop 0
        v_mul_f32 v{b+1}, {f32(-LOG2E)}, v{b+1}''')
    def acc(x, j, m): return ACC + 32 * x + 8 * j + 4 * m
    a(f's_waitcnt vmcnt({3*(PD-1)})')
    for x in range(2):
        for j in range(4):
            for z in range(4):
                a(f'v_pk_mul_f32 {v(acc(x,j,0)+2*z,2)}, {v(CSR+8*j+2*z,2)}, {v(STT+4*x,2)} op_sel_hi:[1,0]')
    a('s_cmp_eq_u32 s27, 1\ns_cbranch_scc1 KG_H1')

    def body(nf, P):
        def reads(b):
            rd = [f'ds_read_b128 {v(XF[b]+4*x,4)}, v{vX} offset:{x*256}' for x in range(2)]
            for j in range(nf):
                for m in range(2):
                    for u in range(2):
                        rd.append(f'ds_read_b64_tr_b16 {v(WF[b]+8*j+4*m+2*u,2)}, v{vO if j & 1 else vE} offset:{u*2048 + m*1024 + (j>>1)*256}')
            return rd
        def mfmas(b):
            return [f'v_mfma_f32_16x16x32_bf16 {v(acc(x,j,m),4)}, {v(WF[b]+8*j+4*m,4)}, {v(XF[b]+4*x,4)}, {v(acc(x,j,m),4)}'
                    for j in range(nf) for m in range(2) for x in range(2)]
        a(f's_mov_b32 s36, {PD*GSLOT}\ns_mov_b32 s38, 0\ns_mov_b32 s41, 0')
        a('.p2align 3')
        a.label(f'{P}_L')
        for b in range(2):
            lw, nd = a.new('KG_W'), a.new('KG_N')
            a(f'''s_waitcnt vmcnt({3*(PD-1)})
            s_cmp_lt_u32 s38, {20 - PD + 1 - b}
            s_cbranch_scc1 {lw}
            s_waitcnt vmcnt(0)''')
            a.label(lw)
            a('s_waitcnt lgkmcnt(0)\ns_barrier')
            rd, mm = reads(b), mfmas(b ^ 1)
            a('\n'.join(interleave(mm[:-2], rd)))
            a(f'''s_add_u32 s41, s41, {GSLOT}
            s_cmp_eq_u32 s41, {GNS*GSLOT}
            s_cselect_b32 s41, 0, s41
            s_cmp_ge_u32 s38, {20 - PD - b}
            s_cbranch_scc1 {nd}''')
            a('\n'.join(dma('s36')))
            a(f'''s_add_u32 s36, s36, {GSLOT}
            s_cmp_eq_u32 s36, {GNS*GSLOT}
            s_cselect_b32 s36, 0, s36''')
            a.label(nd)
            a(f'''{mm[-2]}
            v_add_u32 v{vX}, s41, v{vX0}
            v_add_u32 v{vE}, s41, v{vE0}
            {mm[-1]}
            v_add_u32 v{vO}, s41, v{vO0}''')
        a(f'''s_add_u32 s38, s38, 2
        s_cmp_lt_u32 s38, 20
        s_cbranch_scc1 {P}_L
        s_waitcnt lgkmcnt(0)''')
        a('\n'.join(mfmas(1)))
        a(f'''s_mul_i32 s40, s28, {F*64}
        s_lshl_b32 s30, s30, 10
        s_add_u32 s40, s40, s30
        s_add_u32 s40, s40, {AB}''')
        T = WF[0]
        for j in range(nf):
            y = T + 20 + 4 * (j & 1)
            for x in range(2):
                st = STT + 4 * x
                e = T + 8 * x
                G, U = acc(x, j, 0), acc(x, j, 1)
                for z in range(2):
                    a(f'v_pk_mul_f32 {v(e+2*z,2)}, {v(G+2*z,2)}, {v(st,2)} op_sel:[0,1] op_sel_hi:[1,1]')
                for z in range(4):
                    a(f'v_exp_f32 v{e+z}, v{e+z}')
                for z in range(2):
                    a(f'v_pk_mul_f32 {v(e+4+2*z,2)}, {v(G+2*z,2)}, {v(U+2*z,2)}')
                for z in range(2):
                    a(f'v_pk_fma_f32 {v(e+2*z,2)}, {v(e+2*z,2)}, {v(st+2,2)}, {v(st+2,2)} op_sel_hi:[1,0,0]')
                for z in range(4):
                    a(f'v_rcp_f32 v{e+z}, v{e+z}')
                a('s_nop 0')
                for z in range(2):
                    a(f'v_pk_mul_f32 {v(e+2*z,2)}, {v(e+2*z,2)}, {v(e+4+2*z,2)}')
                for z in range(2):
                    a(f'v_cvt_pk_bf16_f32 v{y+2*x+z}, v{e+2*z}, v{e+2*z+1}')
            a(f'''s_nop 1
            v_permlane16_swap_b32 v{y}, v{y+2}
            v_permlane16_swap_b32 v{y+1}, v{y+3}
            buffer_store_dwordx4 {v(y,4)}, v{vL}, s[12:15], s40 offen offset:{j*1024}''')
        a('s_endpgm')
    body(4, 'KG_A')
    a.label('KG_H1')
    body(3, 'KG_B')
    a.label('KG_END')
    a('s_endpgm')
    return R.hi
```

```python
from common import *

RSLOT = 20480
RNS = 7
XTRA = RNS * RSLOT
LDS_R = XTRA + 12288

def gen_R(a, name, mode):
    P = 'KO' if mode == 'O' else 'KD'
    K = D if mode == 'O' else F
    NST = K // 64
    XBUF = OB if mode == 'O' else AB
    TS = K * 64
    kernel_begin(a, name)
    a(f'''s_cmp_ge_u32 s2, 256
    s_cbranch_scc1 {P}_END
    s_load_dwordx2 s[20:21], s[0:1], {16 if mode == 'O' else 48}
    s_load_dwordx2 s[22:23], s[0:1], {0 if mode == 'O' else 56}
    s_load_dwordx2 s[24:25], s[0:1], 72''')
    wave_id(a, 16)
    a('''s_bfe_u32 s17, s2, 0x20001
    s_lshl_b32 s17, s17, 3
    s_bfe_u32 s18, s2, 0x30003
    s_add_u32 s17, s17, s18
    s_and_b32 s18, s2, 1
    s_lshl_b32 s18, s18, 2
    s_lshr_b32 s19, s2, 6
    s_add_u32 s18, s18, s19
    s_mul_i32 s19, s18, 160
    s_and_b32 s19, s19, 0xffc0''')
    R = Regs(1)
    vr, vg, vt0, vt1 = R(), R(), R(), R()
    a(f'''v_and_b32 v{vr}, 15, v0
    v_lshrrev_b32 v{vg}, 4, v0
    s_waitcnt lgkmcnt(0)''')
    srd(a, 12, 24, WS_SIZE)
    srd(a, 8, 22, S * D * 2)
    a(f's_cmp_lt_u32 s16, 4\ns_cbranch_scc1 {P}_MAIN')
    m0 = R.mark()
    srd(a, 4, 20, K * D * 2)
    vL = R(); vW = R(3, 1)
    a(f'''s_sub_u32 s16, s16, 4
    v_lshlrev_b32 v{vL}, 4, v0''')
    for e in range(3):
        a(f'''v_add_u32 v{vt0}, {4*e}, v{vg}
        v_mul_u32_u24 v{vt1}, 86, v{vt0}
        v_lshrrev_b32 v{vt1}, 8, v{vt1}
        v_mad_i32_i24 v{vt0}, v{vt1}, -3, v{vt0}
        v_and_b32 v{vW+e}, 2, v{vt1}
        v_xor_b32 v{vW+e}, v{vW+e}, v0
        v_and_b32 v{vW+e}, 3, v{vW+e}
        v_lshlrev_b32 v{vW+e}, 4, v{vW+e}
        v_lshl_add_u32 v{vW+e}, v{vt0}, 6, v{vW+e}
        v_bfe_u32 v{vt0}, v0, 2, 2
        v_lshl_add_u32 v{vt0}, v{vt1}, 2, v{vt0}
        v_mul_u32_u24 v{vt0}, 1280, v{vt0}
        v_add_u32 v{vW+e}, v{vW+e}, v{vt0}''')
        if e:
            a(f'v_subrev_u32 v{vW+e}, {e*1024}, v{vW+e}')
    a(f'''s_lshl_b32 s32, s17, 1
    s_lshr_b32 s33, s16, 1
    s_add_u32 s32, s32, s33
    s_mul_i32 s32, s32, {TS}
    s_and_b32 s33, s16, 1
    s_lshl_b32 s33, s33, 11
    s_add_u32 s32, s32, s33
    s_add_u32 s32, s32, {XBUF}
    s_mul_i32 s33, s16, {16*1280}
    s_add_u32 s33, s33, s19
    s_lshl_b32 s34, s16, 11
    s_mul_i32 s35, s16, 3072
    s_add_u32 s35, s35, 8192''')
    pre = 0
    if mode == 'O':
        vx = R(3, 1)
        for e in range(3):
            a(f'''v_lshrrev_b32 v{vt0}, 2, v0
            v_add_u32 v{vt0}, {16*e}, v{vt0}
            v_mul_u32_u24 v{vt1}, 86, v{vt0}
            v_lshrrev_b32 v{vt1}, 8, v{vt1}
            v_mad_i32_i24 v{vt0}, v{vt1}, -3, v{vt0}
            v_mul_u32_u24 v{vt1}, 1280, v{vt1}
            v_lshl_add_u32 v{vt0}, v{vt0}, 6, v{vt1}
            v_and_b32 v{vt1}, 3, v0
            v_lshl_add_u32 v{vx+e}, v{vt1}, 4, v{vt0}''')
            if e:
                a(f'v_subrev_u32 v{vx+e}, {e*1024}, v{vx+e}')
        a(f'''s_lshl_b32 s37, s17, 2
        s_add_u32 s37, s37, s16
        s_mul_i32 s37, s37, {16*1280}
        s_add_u32 s37, s37, s19''')
    def dma(ring):
        return [f's_add_u32 m0, s34, {ring}', 's_nop 0',
                f'buffer_load_dwordx4 v{vL}, s[12:15], s32 offen lds',
                f'buffer_load_dwordx4 v{vL}, s[12:15], s32 offen offset:1024 lds',
                f's_add_u32 m0, s35, {ring}', f's_add_u32 s32, s32, 4096'] + \
               [f'buffer_load_dwordx4 v{vW+e}, s[4:7], s33 offen offset:{e*1024} lds' for e in range(3)] + \
               [f's_add_u32 s33, s33, {64*1280}']
    PD = RNS - 1
    for st in range(PD):
        a('\n'.join(dma(st * RSLOT)))
        if st == 1 and mode == 'O':
            a(f's_add_u32 m0, s35, {XTRA - 8192}\ns_nop 0')
            for e in range(3):
                a(f'buffer_load_dwordx4 v{vx+e}, s[8:11], s37 offen offset:{e*1024} lds')
    extra = 3 if mode == 'O' else 0
    ring = PD * RSLOT
    for i in range(2):
        a(f's_waitcnt vmcnt({5*(PD-1) + extra})\ns_barrier')
        a('\n'.join(dma(ring)))
        ring = (ring + RSLOT) % (RNS * RSLOT)
    if NST - PD > 2:
        a(f's_mov_b32 s36, {ring}\ns_mov_b32 s38, {NST - PD - 2}')
        a.label(f'{P}_LL')
        a(f's_waitcnt vmcnt({5*(PD-1)})\ns_barrier')
        a('\n'.join(dma('s36')))
        a(f'''s_add_u32 s36, s36, {RSLOT}
        s_cmp_eq_u32 s36, {RNS*RSLOT}
        s_cselect_b32 s36, 0, s36
        s_sub_u32 s38, s38, 1
        s_cmp_lg_u32 s38, 0
        s_cbranch_scc1 {P}_LL''')
    for i in range(NST - PD, NST):
        a(f's_waitcnt vmcnt({5*(NST-1-i)})\ns_barrier')
    if mode == 'D':
        a('s_barrier')
        hi_l = R.hi
        a(f's_branch {P}_STORE')
    else:
        a('s_endpgm')
    hi_l = R.hi

    a.label(f'{P}_MAIN')
    R.release(m0)
    vX0, vE0, vO0, vX, vE, vO = [R() for _ in range(6)]
    ACC = R(20, 4)
    XF = [R(4, 4), R(4, 4)]; WF = [R(20, 4), R(20, 4)]
    vS = R(5, 1); T = R(24, 4)
    a(f'''s_lshl_b32 s32, s17, 1
    s_lshr_b32 s33, s16, 1
    s_add_u32 s32, s32, s33
    s_mul_i32 s32, s32, 40960
    s_mul_i32 s33, s18, 5120
    s_add_u32 s32, s32, s33
    s_and_b32 s33, s16, 1
    s_lshl_b32 s33, s33, 8
    s_add_u32 s32, s32, s33
    s_add_u32 s32, s32, {HB}
    v_lshrrev_b32 v{vt0}, 1, v{vg}
    v_lshlrev_b32 v{vt0}, 9, v{vt0}
    v_lshl_add_u32 v{vt0}, v{vr}, 4, v{vt0}
    v_and_b32 v{vt1}, 1, v{vg}
    v_lshl_add_u32 v{vS}, v{vt1}, 3, v{vt0}''')
    if mode == 'D':
        for t in range(5):
            a(f'buffer_load_dwordx2 {v(T+2*t,2)}, v{vS}, s[12:15], s32 offen offset:{t*1024}' if t < 4 else
              f's_add_u32 s34, s32, 4096\nbuffer_load_dwordx2 {v(T+2*t,2)}, v{vS}, s[12:15], s34 offen')
    a(f'''s_lshr_b32 s34, s16, 1
    s_lshl_b32 s34, s34, 12
    s_add_u32 s34, s34, s33
    v_lshlrev_b32 v{vX0}, 9, v{vg}
    v_lshl_add_u32 v{vX0}, v{vr}, 4, v{vX0}
    v_add_u32 v{vX0}, s34, v{vX0}
    s_and_b32 s35, s18, 1
    v_mul_u32_u24 v{vt0}, 1536, v{vg}
    v_bfe_u32 v{vE0}, v0, 2, 2
    v_lshl_add_u32 v{vt0}, v{vE0}, 6, v{vt0}
    v_and_b32 v{vE0}, 3, v0
    v_lshl_add_u32 v{vt0}, v{vE0}, 3, v{vt0}
    v_xor_b32 v{vt1}, s35, v{vt1}
    v_lshl_add_u32 v{vE0}, v{vt1}, 5, v{vt0}
    v_add_u32 v{vE0}, 8192, v{vE0}
    s_lshl_b32 s36, s35, 8
    v_xor_b32 v{vO0}, 32, v{vE0}
    v_add_u32 v{vO0}, s36, v{vO0}
    v_mov_b32 v{vX}, v{vX0}
    v_mov_b32 v{vE}, v{vE0}
    v_mov_b32 v{vO}, v{vO0}''')
    if mode == 'D':
        a('s_waitcnt vmcnt(0)')
        for t in range(5):
            for z in range(2):
                a(f'''v_lshlrev_b32 v{ACC+4*t+2*z}, 16, v{T+2*t+z}
                v_and_b32 v{ACC+4*t+2*z+1}, 0xffff0000, v{T+2*t+z}''')
    else:
        for k in range(20):
            a(f'v_mov_b32 v{ACC+k}, 0')
    for k in range(4):
        a(f'v_mov_b32 v{XF[1]+k}, 0')
    for k in range(20):
        a(f'v_mov_b32 v{WF[1]+k}, 0')
    def reads(b, ks):
        rd = [f'ds_read_b128 {v(XF[b],4)}, v{vX} offset:{ks*2048}']
        for t in range(5):
            for u in range(2):
                rd.append(f'ds_read_b64_tr_b16 {v(WF[b]+4*t+2*u,2)}, v{vO if t & 1 else vE} offset:{(8*ks+u)*768 + (t>>1)*256}')
        return rd
    def mfmas(b):
        return [f'v_mfma_f32_16x16x32_bf16 {v(ACC+4*t,4)}, {v(WF[b]+4*t,4)}, {v(XF[b],4)}, {v(ACC+4*t,4)}' for t in range(5)]
    a(f's_mov_b32 s36, 0\ns_mov_b32 s38, {NST}')
    a('.p2align 3')
    a.label(f'{P}_CL')
    a('s_waitcnt lgkmcnt(0)\ns_barrier')
    rd, mm = reads(0, 0), mfmas(1)
    a('\n'.join(rd[0:3] + [mm[0]] + rd[3:5] + [mm[1]] + rd[5:7] + [mm[2]] + rd[7:9] + [mm[3]] + rd[9:11] + [mm[4]]))
    a(f'''s_add_u32 s36, s36, {RSLOT}
    s_cmp_eq_u32 s36, {RNS*RSLOT}
    s_cselect_b32 s36, 0, s36
    s_waitcnt lgkmcnt(0)''')
    rd, mm = reads(1, 1), mfmas(0)
    a('\n'.join(rd[0:3] + [mm[0]] + rd[3:5] + [mm[1]] + rd[5:7] + [mm[2]] + rd[7:9] + [mm[3]] + rd[9:11] + [mm[4]]))
    a(f'''v_add_u32 v{vX}, s36, v{vX0}
    v_add_u32 v{vE}, s36, v{vE0}
    v_add_u32 v{vO}, s36, v{vO0}
    s_sub_u32 s38, s38, 1
    s_cmp_lg_u32 s38, 0
    s_cbranch_scc1 {P}_CL''')
    if mode == 'O':
        a(f'''s_mul_i32 s34, s16, {16*192}
        s_lshl_b32 s35, s35, 5
        s_add_u32 s34, s34, s35
        s_add_u32 s34, s34, {XTRA}
        v_mul_u32_u24 v{vt0}, 192, v{vr}
        v_lshl_add_u32 v{vt0}, v{vg}, 3, v{vt0}
        v_add_u32 v{vt0}, s34, v{vt0}''')
        for t in range(5):
            a(f'ds_read_b64 {v(T+2*t,2)}, v{vt0} offset:{t*32}')
        a('s_waitcnt lgkmcnt(5)')
        a('\n'.join(mfmas(1)))
        U = XF[0]; SM = XF[0] + 2
        a(f'''s_lshl_b32 s34, s17, 2
        s_add_u32 s34, s34, s16
        s_lshl_b32 s34, s34, 10
        s_lshl_b32 s35, s18, 3
        s_add_u32 s34, s34, s35
        s_add_u32 s34, s34, {ST}
        v_lshlrev_b32 v{vt0}, 6, v{vr}
        v_mov_b32 v{T+12}, 0
        v_mov_b32 v{T+13}, 0
        v_mov_b32 v{T+14}, 0
        v_mov_b32 v{T+15}, 0
        s_waitcnt lgkmcnt(0)''')
        for t in range(5):
            for z in range(2):
                c = ACC + 4 * t + 2 * z
                a(f'''v_lshlrev_b32 v{U}, 16, v{T+2*t+z}
                v_and_b32 v{U+1}, 0xffff0000, v{T+2*t+z}
                v_pk_add_f32 {v(c,2)}, {v(c,2)}, {v(U,2)}
                v_cvt_pk_bf16_f32 v{T+2*t+z}, v{c}, v{c+1}
                v_pk_add_f32 {v(T+12,2)}, {v(T+12,2)}, {v(c,2)}
                v_pk_fma_f32 {v(T+14,2)}, {v(c,2)}, {v(c,2)}, {v(T+14,2)}''')
            a(f'buffer_store_dwordx2 {v(T+2*t,2)}, v{vS}, s[12:15], s32 offen offset:{t*1024}' if t < 4 else
              f's_add_u32 s35, s32, 4096\nbuffer_store_dwordx2 {v(T+2*t,2)}, v{vS}, s[12:15], s35 offen')
        a(f'''v_add_f32 v{T+12}, v{T+12}, v{T+13}
        v_add_f32 v{T+13}, v{T+14}, v{T+15}
        v_mov_b32 v{T+14}, v{T+12}
        v_mov_b32 v{T+15}, v{T+13}
        s_nop 1
        v_permlane16_swap_b32 v{T+12}, v{T+14}
        v_permlane16_swap_b32 v{T+13}, v{T+15}
        v_pk_add_f32 {v(T+12,2)}, {v(T+12,2)}, {v(T+14,2)}
        v_mov_b32 v{T+14}, v{T+12}
        v_mov_b32 v{T+15}, v{T+13}
        s_nop 1
        v_permlane32_swap_b32 v{T+12}, v{T+14}
        v_permlane32_swap_b32 v{T+13}, v{T+15}
        v_pk_add_f32 {v(T+12,2)}, {v(T+12,2)}, {v(T+14,2)}
        s_mov_b64 exec, 0xffff
        buffer_store_dwordx2 {v(T+12,2)}, v{vt0}, s[12:15], s34 offen
        s_endpgm''')
    else:
        a('s_waitcnt lgkmcnt(0)')
        a('\n'.join(mfmas(1)))
        a(f'''s_mul_i32 s34, s16, {16*176}
        s_add_u32 s34, s34, {XTRA}
        v_mul_u32_u24 v{vt0}, 176, v{vr}
        v_lshl_add_u32 v{vt0}, v{vg}, 3, v{vt0}
        v_add_u32 v{vt0}, s34, v{vt0}
        s_nop 2''')
        for t in range(5):
            a(f'''v_cvt_pk_bf16_f32 v{T+2*t}, v{ACC+4*t}, v{ACC+4*t+1}
            v_cvt_pk_bf16_f32 v{T+2*t+1}, v{ACC+4*t+2}, v{ACC+4*t+3}
            ds_write_b64 v{vt0}, {v(T+2*t,2)} offset:{t*32}''')
        a(f'''s_waitcnt lgkmcnt(0)
        s_barrier
        s_add_u32 s16, s16, 4''')
        a.label(f'{P}_STORE')
        d0 = 8
        a(f'''s_mul_i32 s34, s16, 80
        s_mul_i32 s35, s17, {64*1280}
        s_mul_i32 s36, s18, 160
        s_add_u32 s35, s35, s36''')
        for z in range(2):
            a(f'''v_add_u32 v{vt0}, s34, v0
            v_add_u32 v{vt0}, {64*z}, v{vt0}
            v_mul_u32_u24 v{vt1}, 6554, v{vt0}
            v_lshrrev_b32 v{vt1}, 16, v{vt1}
            v_mad_i32_i24 v{vt0}, v{vt1}, -10, v{vt0}
            v_lshlrev_b32 v{vt0}, 4, v{vt0}
            v_mul_u32_u24 v{d0+8+z}, 1280, v{vt1}
            v_add_u32 v{d0+8+z}, v{d0+8+z}, v{vt0}
            v_mul_u32_u24 v{vt1}, 176, v{vt1}
            v_add3_u32 v{vt0}, v{vt0}, v{vt1}, 0
            v_add_u32 v{vt0}, {XTRA}, v{vt0}
            ds_read_b128 {v(d0+4*z,4)}, v{vt0}''')
        a(f'''s_waitcnt lgkmcnt(1)
        buffer_store_dwordx4 {v(d0,4)}, v{d0+8}, s[8:11], s35 offen
        s_mov_b64 exec, 0xffff
        s_waitcnt lgkmcnt(0)
        buffer_store_dwordx4 {v(d0+4,4)}, v{d0+9}, s[8:11], s35 offen''')
    a.label(f'{P}_END')
    a('s_endpgm')
    return max(hi_l, R.hi, 20)
```

```python
class Asm:
    def __init__(self):
        self.L = []
        self.uid = 0
    def __call__(self, s):
        for line in s.strip('\n').split('\n'):
            line = line.strip()
            if not line:
                continue
            self.L.append(line if line.endswith(':') or line.startswith('.') else '  ' + line)
    def label(self, name):
        self.L.append(name + ':')
    def new(self, base):
        self.uid += 1
        return f'{base}_{self.uid}'
    def text(self):
        return '\n'.join(self.L) + '\n'

class Regs:
    def __init__(self, start=1, limit=256):
        self.n = start; self.limit = limit; self.hi = start
    def __call__(self, cnt=1, align=None):
        if align is None:
            align = 1 if cnt == 1 else 2
        self.n = (self.n + align - 1) // align * align
        a = self.n
        self.n += cnt
        assert self.n <= self.limit, 'out of registers'
        self.hi = max(self.hi, self.n)
        return a
    def mark(self): return self.n
    def release(self, m): self.n = m

def v(a, n=1):
    return f'v{a}' if n == 1 else f'v[{a}:{a+n-1}]'
def s(a, n=1):
    return f's{a}' if n == 1 else f's[{a}:{a+n-1}]'

def interleave(main, fill, start=0):
    out = []
    n = len(main) - start
    k = 0
    for i, m in enumerate(main):
        out.append(m)
        if i >= start:
            want = (len(fill) * (i - start + 1) + n - 1) // n
            while k < want:
                out.append(fill[k]); k += 1
    out += fill[k:]
    return out

import struct
def f32(x):
    return '0x%08x' % struct.unpack('<I', struct.pack('<f', x))[0]

def kernel_begin(a, name):
    a(f'.globl {name}\n.p2align 8\n.type {name},@function')
    a.label(name)

def descriptor(name, vgpr, sgpr=96):
    vg = (vgpr + 7) // 8 * 8
    return f'''.amdhsa_kernel {name}
  .amdhsa_next_free_vgpr {vg}
  .amdhsa_next_free_sgpr {sgpr}
  .amdhsa_accum_offset {vg}
  .amdhsa_group_segment_fixed_size 0
  .amdhsa_kernarg_size 80
  .amdhsa_user_sgpr_count 2
  .amdhsa_user_sgpr_kernarg_segment_ptr 1
  .amdhsa_system_sgpr_workgroup_id_x 1
  .amdhsa_float_denorm_mode_32 3
.end_amdhsa_kernel
'''

def srd(a, d, lo, nbytes):
    a(f's_mov_b32 s{d}, s{lo}\ns_mov_b32 s{d+1}, s{lo+1}\ns_mov_b32 s{d+2}, {nbytes}\ns_mov_b32 s{d+3}, 0x20000')
```

```python
import sys
from common import *
import ka, kb, kr, kg

HEADER = open('sequential_preLN__softmax_full_mha__swiglu_ffn__prompt.s.ref').read().split('; Override')[0]

def build():
    a = Asm()
    ks = [('ka_kernel', lambda n: ka.gen_A(a, n), ka.LDS_A),
          ('kb_kernel', lambda n: kb.gen_B(a, n), kb.LDS_B),
          ('ko_kernel', lambda n: kr.gen_R(a, n, 'O'), kr.LDS_R),
          ('kg_kernel', lambda n: kg.gen_G(a, n), kg.LDS_G),
          ('kd_kernel', lambda n: kr.gen_R(a, n, 'D'), kr.LDS_R)]
    out = HEADER
    for n, _, lds in ks:
        out += f'; @launch kernel={n} grid=(256,1,1) block=(512,1,1) lds={lds}\n'
    out += '.amdgcn_target "amdgcn-amd-amdhsa--gfx950"\n.text\n'
    vg = {}
    for n, g, _ in ks:
        vg[n] = g(n)
    out += a.text()
    out += '.section .rodata,"a"\n'
    for n, _, _ in ks:
        out += '.p2align 6\n' + descriptor(n, vg[n])
    return out, vg

if __name__ == '__main__':
    out, vg = build()
    path = sys.argv[1] if len(sys.argv) > 1 else 'sequential_preLN__softmax_full_mha__swiglu_ffn__prompt.s'
    open(path, 'w').write(out)
    print(vg, len(out))
```
